```python
import torch

def _softmax(x, axis=-1):
    return torch.softmax(x, dim=axis)

def _gelu(x):
    return torch.nn.functional.gelu(x, approximate='tanh')

def _silu(x):
    return torch.nn.functional.silu(x)

def _sigmoid(x):
    return torch.sigmoid(x)

def _layernorm(x, axis=-1, eps=1e-05):
    m = x.mean(dim=axis, keepdim=True)
    v = x.var(dim=axis, keepdim=True, unbiased=False)
    return (x - m) / torch.sqrt(v + eps)

def _scatter_add(tgt, idx, src, axis=0):
    return tgt.clone().index_add_(axis, idx, src)

def _segment_sum(src, seg, n):
    out = torch.zeros((n,) + src.shape[1:], dtype=src.dtype)
    return out.index_add_(0, seg, src)

def _pad(x, pw):
    flat = tuple((v for pair in reversed(pw) for v in pair))
    return torch.nn.functional.pad(x, flat)
kernel_name = 'adaLN_cond__softmax_full_mha__glu_gated_geglu__prompt'

def setup_inputs():

    _w = lambda a: (lambda t: t.to(torch.bfloat16) if t.is_floating_point() else t)(torch.as_tensor(a))

    def _A_setup():
        B, S, D = (1, 2048, 448)
        return {'x': _w((lambda *s: torch.randn(*s, dtype=torch.bfloat16) * 0.05)(B, S, D)), 'wqkv': _w((lambda *s: torch.randn(*s, dtype=torch.bfloat16) * 0.05)(D, 3 * D)), 'wo': _w((lambda *s: torch.randn(*s, dtype=torch.bfloat16) * 0.05)(D, D))}
    _A_in = _A_setup()

    def _B_setup():
        B, S, Dm, Df = (1, 2048, 448, 1792)
        return {'x': _w((lambda *s: torch.randn(*s, dtype=torch.bfloat16) * 0.05)(B, S, Dm)), 'w_gate': _w((lambda *s: torch.randn(*s, dtype=torch.bfloat16) * 0.8)(Dm, Df) * Dm ** (-0.5)), 'w_up': _w((lambda *s: torch.randn(*s, dtype=torch.bfloat16) * 0.8)(Dm, Df) * Dm ** (-0.5)), 'w_down': _w((lambda *s: torch.randn(*s, dtype=torch.bfloat16) * 0.8)(Df, Dm) * Df ** (-0.5))}
    _B_in = _B_setup()
    return {'A_x': _A_in['x'], 'A_wqkv': _A_in['wqkv'], 'A_wo': _A_in['wo'], 'B_x': _B_in['x'], 'B_w_gate': _B_in['w_gate'], 'B_w_up': _B_in['w_up'], 'B_w_down': _B_in['w_down'], 'c': _w((lambda *s: torch.randn(*s, dtype=torch.bfloat16) * 0.1)(1, 448) * 8.0), 'w_mod': _w((lambda *s: torch.randn(*s, dtype=torch.bfloat16) * 0.1)(448, 6 * 448) * 448 ** (-0.5) * 8.0)}

def reference(A_x, A_wqkv, A_wo, B_x, B_w_gate, B_w_up, B_w_down, c, w_mod):

    def _A_ref(x, wqkv, wo):
        B, S, D = x.shape
        H = 16
        Dh = D // H
        qkv = (lambda x, *d: x.permute(*d))((x @ wqkv).reshape(B, S, 3, H, Dh), 2, 0, 3, 1, 4)
        q, k, v = (qkv[0], qkv[1], qkv[2])
        scale = Dh ** (-0.5)
        scores = torch.einsum('bhqd,bhkd->bhqk', q, k) * scale
        p = _softmax(scores, axis=-1)
        o = torch.einsum('bhqk,bhkd->bhqd', p, v)
        return (lambda x, *d: x.permute(*d))(o, 0, 2, 1, 3).reshape(B, S, D) @ wo

    def _B_ref(x, w_gate, w_up, w_down):
        g = torch.einsum('bsd,df->bsf', x, w_gate)
        u = torch.einsum('bsd,df->bsf', x, w_up)
        h = _gelu(g) * u
        return torch.einsum('bsf,fd->bsd', h, w_down)
    x = A_x
    mod = (_silu(c) @ w_mod).reshape(c.shape[0], 6, 1, -1)
    sa, ca, ga, sb, cb, gb = (mod[:, 0].clone(), mod[:, 1].clone(), mod[:, 2].clone(), mod[:, 3].clone(), mod[:, 4].clone(), mod[:, 5].clone())
    h = _layernorm(x, axis=-1) * (1 + ca) + sa
    x = x + ga * _A_ref(h, A_wqkv, A_wo)
    h = _layernorm(x, axis=-1) * (1 + cb) + sb
    x = x + gb * _B_ref(h, B_w_gate, B_w_up, B_w_down)
    return x
```

```python
import re

class Asm:
    def __init__(self):
        self.lines = []
        self._uid = 0
    def e(self, s):
        for l in s.split("\n"):
            l = l.strip()
            if l:
                self.lines.append(l)
    def __call__(self, s):
        self.e(s)
    def uid(self, p="L"):
        self._uid += 1
        return f"{p}_{self._uid}"
    def label(self, name):
        self.lines.append(name + ":")
    def text(self):
        return "\n".join(self.lines) + "\n"

_reg_re = re.compile(r"^(-|\|)?(abs\()?([vas])(\d+)\)?\|?$")
_rng_re = re.compile(r"^(-)?([vas])\[(\d+):(\d+)\]$")
def regs_of(op):
    op = op.strip()
    m = _rng_re.match(op)
    if m:
        return {(m.group(2), i) for i in range(int(m.group(3)), int(m.group(4)) + 1)}
    m = _reg_re.match(op)
    if m:
        return {(m.group(3), int(m.group(4)))}
    if op == "vcc":
        return {("s", "vcc_lo"), ("s", "vcc_hi")}
    if op in ("vcc_lo", "vcc_hi"):
        return {("s", op)}
    if op == "exec":
        return {("s", "exec_lo"), ("s", "exec_hi")}
    if op in ("exec_lo", "exec_hi"):
        return {("s", op)}
    if op == "m0":
        return {("s", "m0")}
    return set()

def split_ops(rest):
    out, depth, cur = [], 0, ""
    for ch in rest:
        if ch in "[(":
            depth += 1
        if ch in "])":
            depth -= 1
        if ch == "," and depth == 0:
            out.append(cur.strip()); cur = ""
        else:
            cur += ch
    if cur.strip():
        out.append(cur.strip())
    return out

TRANS = ("v_exp_f32", "v_log_f32", "v_rcp_f32", "v_rsq_f32", "v_sqrt_f32", "v_sin_f32", "v_cos_f32", "v_rcp_iflag_f32",
         "v_exp_f16", "v_rcp_f16", "v_rsq_f16", "v_sqrt_f16", "v_log_f16")

class Ins:
    __slots__ = ("text", "op", "kind", "w", "r", "mf_d", "mf_c", "mf_ab", "passes", "wide_store_data", "states", "is_trans",
                 "dpp", "sdwa_or_opsel", "permlane", "readlane", "lds_dma", "sgpr_const_reads", "vmem_sgpr_reads", "lanesel")
    def __init__(self, text):
        self.text = text
        t = text.split(";")[0].strip()
        parts = t.split(None, 1)
        self.op = op = parts[0]
        rest = parts[1] if len(parts) > 1 else ""
        self.w = set(); self.r = set()
        self.mf_d = self.mf_c = self.mf_ab = None
        self.passes = 0
        self.wide_store_data = set()
        self.states = 1
        self.is_trans = False
        self.dpp = False; self.sdwa_or_opsel = False; self.permlane = False; self.readlane = False; self.lds_dma = False
        self.sgpr_const_reads = set(); self.vmem_sgpr_reads = set(); self.lanesel = set()
        base = re.sub(r"_(e32|e64|dpp|sdwa)$", "", op)
        ops = split_ops(rest)
        mods = ""
        if ops:
            last = ops[-1].split()
            if len(last) > 1:
                mods = " ".join(last[1:])
                ops[-1] = last[0]
        if op == "s_nop":
            self.kind = "nop"; self.states = int(rest.strip(), 0) + 1
            return
        if op.startswith("v_mfma") or op.startswith("v_smfmac"):
            self.kind = "mfma"
            d, a, b, c = ops[0], ops[1], ops[2], ops[3]
            self.mf_d = regs_of(d); self.mf_ab = regs_of(a) | regs_of(b); self.mf_c = regs_of(c)
            self.w = set(self.mf_d); self.r = self.mf_ab | self.mf_c
            if "32x32x16" in op or "32x32x8" in op: self.passes = 8
            elif "16x16x32" in op or "16x16x16" in op: self.passes = 4
            else: raise ValueError("unknown mfma " + op)
            return
        if op.startswith("v_"):
            self.kind = "valu"
            self.is_trans = base in TRANS
            self.dpp = op.endswith("_dpp") or "row_" in mods or "quad_perm" in mods or "wave_" in mods
            self.sdwa_or_opsel = op.endswith("_sdwa") or "op_sel" in mods or "dst_sel" in mods
            if base.startswith("v_cmp"):
                self.w = regs_of(ops[0]); srcs = ops[1:]
                if base.startswith("v_cmpx"): self.w |= regs_of("exec")
            elif base in ("v_readfirstlane_b32", "v_readlane_b32"):
                self.w = regs_of(ops[0]); srcs = ops[1:]; self.readlane = True
                if base == "v_readlane_b32": self.lanesel = regs_of(ops[2])
            elif base == "v_writelane_b32":
                self.w = regs_of(ops[0]); srcs = ops[1:]; self.lanesel = regs_of(ops[2])
            elif base.startswith("v_permlane") and "swap" in base:
                self.w = regs_of(ops[0]) | regs_of(ops[1]); srcs = ops; self.permlane = True
            elif base in ("v_add_co_u32", "v_sub_co_u32", "v_subrev_co_u32", "v_addc_co_u32", "v_subb_co_u32"):
                self.w = regs_of(ops[0]) | regs_of(ops[1]); srcs = ops[2:]
            elif base in ("v_fmac_f32", "v_fmac_f16", "v_mac_f32", "v_pk_fmac_f16", "v_dot2c_f32_bf16"):
                self.w = regs_of(ops[0]); srcs = ops
            else:
                self.w = regs_of(ops[0]); srcs = ops[1:]
                if base == "v_cndmask_b32" and len(ops) == 3:
                    srcs = srcs + ["vcc"]
                if self.sdwa_or_opsel and ("UNUSED_PRESERVE" in mods):
                    srcs = srcs + [ops[0]]
            for s in srcs:
                rr = regs_of(s)
                self.r |= rr
                self.sgpr_const_reads |= {x for x in rr if x[0] == "s"}
            return
        if op.startswith("ds_"):
            self.kind = "ds"
            if op.startswith("ds_read") or op.startswith("ds_bpermute") or op.startswith("ds_permute") or op.startswith("ds_swizzle"):
                self.w = regs_of(ops[0])
                for s in ops[1:]: self.r |= regs_of(s)
            else:
                for s in ops: self.r |= regs_of(s)
            return
        if op.startswith(("buffer_", "global_", "flat_")):
            self.kind = "vmem"
            toks = (mods + " ").split()
            if op in ("buffer_inv", "buffer_wbl2"):
                return
            is_lds = "lds" in toks or "_lds_" in op
            self.lds_dma = is_lds
            is_store = "_store" in op
            is_atomic = "_atomic" in op
            if is_lds:
                srcs = ops
                self.r |= {("s", "m0")}
            elif is_store:
                if op.startswith("buffer_"):
                    data = ops[0]; srcs = ops
                else:
                    data = ops[1]; srcs = ops
                if op.endswith(("x3", "x4")):
                    self.wide_store_data = regs_of(data)
            elif is_atomic:
                srcs = ops
                if "sc0" in toks:
                    self.w = regs_of(ops[0])
            else:
                self.w = regs_of(ops[0]); srcs = ops[1:]
                if "d16" in op: srcs = ops
            for s in srcs:
                rr = regs_of(s)
                self.r |= rr
                self.vmem_sgpr_reads |= {x for x in rr if x[0] == "s"}
            return
        if op.startswith("s_"):
            self.kind = "salu"
            nodst = ("s_cmp", "s_cbranch", "s_branch", "s_waitcnt", "s_barrier", "s_endpgm", "s_sleep", "s_setprio", "s_bitcmp", "s_setreg", "s_sethalt", "s_trap", "s_nop")
            if op.startswith(nodst):
                for s in ops: self.r |= regs_of(s)
            else:
                self.w = regs_of(ops[0]) if ops else set()
                for s in ops[1:]: self.r |= regs_of(s)
                if "saveexec" in op:
                    self.w |= regs_of("exec")
            return
        raise ValueError("cannot parse: " + text)

def mf_valu_dist(p):
    return {2: 5, 4: 8, 8: 12, 16: 20}[p]
def mf_c_overlap(p):
    return {2: 4, 4: 6, 8: 10, 16: 18}[p]
def mf_c_war(p):
    return {2: 1, 4: 3, 8: 7, 16: 15}[p]

def isv(x): return x[0] in "va"

def required(prod, cons):
    need = 0
    pk, ck = prod.kind, cons.kind
    if pk == "valu":
        pw_v = {x for x in prod.w if isv(x)}
        pw_s = {x for x in prod.w if x[0] == "s"}
        if ck == "mfma" and pw_v & cons.r: need = max(need, 2)
        if ck == "valu":
            if prod.is_trans and (pw_v & cons.r) : need = max(need, 1)
            if cons.permlane and (pw_v & cons.r): need = max(need, 2)
            if cons.dpp and (pw_v & cons.r): need = max(need, 2)
            if cons.readlane and (pw_v & cons.r): need = max(need, 1)
            if prod.sdwa_or_opsel and (pw_v & (cons.r | cons.w)): need = max(need, 1)
            if pw_s & cons.sgpr_const_reads: need = max(need, 2)
            if pw_s & cons.lanesel: need = max(need, 4)
            if (("s", "exec_lo") in pw_s):
                need = max(need, 5 if cons.dpp else 4 if (cons.readlane or cons.permlane) else 0)
        if ck == "mfma" and (("s", "exec_lo") in pw_s): need = max(need, 4)
        if ck == "vmem" and (pw_s & cons.vmem_sgpr_reads): need = max(need, 5)
    if pk == "mfma":
        D = prod.mf_d
        if ck == "mfma":
            if D & cons.mf_ab: need = max(need, mf_valu_dist(prod.passes))
            if D & cons.mf_c:
                if cons.mf_c == D and cons.passes == prod.passes: need = max(need, 2 if prod.passes == 2 else 0)
                else: need = max(need, mf_c_overlap(prod.passes))
            elif D & cons.mf_d:
                need = max(need, mf_c_overlap(prod.passes))
        elif ck in ("valu", "ds", "vmem"):
            if D & (cons.r | cons.w): need = max(need, mf_valu_dist(prod.passes))
            if ck == "valu" and (prod.mf_c & cons.w): need = max(need, mf_c_war(prod.passes))
            if ck in ("ds", "vmem") and (prod.mf_c & cons.w): need = max(need, mf_c_war(prod.passes))
    if pk == "vmem" and prod.wide_store_data:
        if prod.wide_store_data & cons.w:
            need = max(need, 2 if ck == "valu" else 1)
    if pk == "salu" and ("s", "m0") in prod.w and cons.lds_dma: need = max(need, 1)
    return need

WINDOW = 22
def fix_hazards(lines, verbose=False):
    items = []
    for l in lines:
        s = l.split(";")[0].strip()
        if not s or (s.startswith(".") and not s.endswith(":")):
            items.append(["dir", l]); continue
        if s.endswith(":"):
            items.append(["label", s[:-1]]); continue
        items.append(["ins", Ins(l)])
    jumps = {}
    for it in items:
        if it[0] == "ins" and it[1].op.startswith(("s_cbranch", "s_branch")):
            tgt = it[1].text.split(";")[0].split()[1]
            jumps.setdefault(tgt, []).append(it)
    pos = [None]
    def index_of(it):
        if pos[0] is None:
            pos[0] = {id(x): k for k, x in enumerate(items)}
        return pos[0][id(it)]
    inserted = 0
    i = 0
    while i < len(items):
        it = items[i]
        if it[0] != "ins" or it[1].kind in ("nop", "salu"):
            i += 1; continue
        cons = it[1]
        best = 0
        stack = [(i - 1, 0, False)]
        seen = set()
        while stack:
            j, dist, via_jump = stack.pop()
            while j >= 0 and dist < WINDOW:
                p = items[j]
                if p[0] == "label":
                    for b in jumps.get(p[1], []):
                        bi = index_of(b)
                        if (bi, dist) not in seen:
                            seen.add((bi, dist)); stack.append((bi, dist, True))
                    j -= 1; continue
                if p[0] == "dir":
                    j -= 1; continue
                pi = p[1]
                if pi.op in ("s_branch", "s_endpgm", "s_setpc_b64") and not via_jump:
                    break
                via_jump = False
                need = required(pi, cons)
                if need > dist:
                    best = max(best, need - dist)
                dist += pi.states
                j -= 1
        if best > 0:
            n = best; nops = []
            while n > 0:
                k = min(n, 16)
                nops.append(["ins", Ins(f"s_nop {k-1}")]); n -= k
            items[i:i] = nops
            pos[0] = None
            inserted += best
            if verbose: print("inserted", best, "before", cons.text)
            i += len(nops)
        i += 1
    out = []
    for it in items:
        if it[0] == "dir": out.append(it[1])
        elif it[0] == "label": out.append(it[1] + ":")
        else: out.append(it[1].text)
    return out, inserted
```

```python
from asm import Asm
S, D, H, DH, DF = 2048, 448, 16, 28, 1792
KA_X, KA_WQKV, KA_WO, KA_BX, KA_WG, KA_WU, KA_WD, KA_C, KA_WMOD, KA_OUT, KA_DBG, KA_WS = [8*i for i in range(12)]
SZ_X = S*D*2; SZ_WQKV = D*3*D*2; SZ_WO = D*D*2; SZ_WG = D*DF*2; SZ_WD = DF*D*2; SZ_C = D*2; SZ_WMOD = D*6*D*2; SZ_OUT = S*D*2
WS_MOD  = 0x0000000
WS_KMAX = 0x0004000
WS_STAT = 0x0008000
WS_FLAG = 0x0048000
WS_Q    = 0x0100000
WS_K    = 0x0300000
WS_V    = 0x0500000
WS_O    = 0x0700000
WS_X1   = 0x0900000
WS_H2   = 0x0B00000
WS_HH   = 0x0D00000
WS_WO   = 0x1400000
WS_WGU  = 0x1500000
WS_WD   = 0x1900000
WS_SIZE = 0x1C00000
SENT = 0x7FFFABCD

SRD_W3 = 0x20000
def srd(a, q, ka_off, size):
    a(f"s_load_dwordx2 s[{q}:{q+1}], s[0:1], {ka_off}")
    a(f"s_mov_b32 s{q+2}, {size}")
    a(f"s_mov_b32 s{q+3}, {SRD_W3}")

def kernel_begin(a, name, nwg):
    a.lines.append(f".globl {name}")
    a.lines.append(".p2align 8")
    a.lines.append(f".type {name},@function")
    a.label(name)
    a(f"s_cmp_ge_u32 s2, {nwg}")
    a(f"s_cbranch_scc1 {name}_exit")
    a("v_lshrrev_b32 v2, 6, v0")
    a("v_and_b32 v1, 63, v0")
    a("v_readfirstlane_b32 s3, v2")
    a("s_and_b32 s4, s2, 7")
    a("s_lshr_b32 s5, s2, 3")
    srd(a, 8, KA_WS, WS_SIZE)

def kernel_end(a, name):
    a.label(name + "_exit")
    a("s_endpgm")

def kdesc(name, vgpr, agpr=0, sgpr=100):
    acc = (vgpr + 3)//4*4
    tot = acc + agpr if agpr else vgpr
    return f""".amdhsa_kernel {name}
  .amdhsa_next_free_vgpr {tot}
  .amdhsa_next_free_sgpr {sgpr}
  .amdhsa_accum_offset {acc}
  .amdhsa_group_segment_fixed_size 0
  .amdhsa_kernarg_size 96
  .amdhsa_user_sgpr_count 2
  .amdhsa_user_sgpr_kernarg_segment_ptr 1
  .amdhsa_system_sgpr_workgroup_id_x 1
  .amdhsa_float_denorm_mode_32 3
.end_amdhsa_kernel
"""
```

```python
from common import *
from k_qkv import f32bits

AQ, AO, AS, AP, AKV = 16, 48, 112, 144, 152
LDS_ATT = 0

def attn_prologue(a, ld_flags=""):
    a("s_and_b32 s6, s5, 1"); a("s_lshl_b32 s28, s4, 1"); a("s_add_u32 s6, s6, s28")
    a("s_lshr_b32 s7, s5, 1")
    a("v_lshlrev_b32 v2, 4, v1")
    a("s_lshl_b32 s28, s6, 6"); a("s_lshl_b32 s29, s3, 4"); a("s_add_u32 s29, s29, s28"); a("s_lshl_b32 s29, s29, 11")
    a(f"s_add_u32 s40, s29, {WS_K}"); a(f"s_add_u32 s41, s29, {WS_V}")
    a("s_lshl_b32 s30, s7, 2"); a("s_add_u32 s30, s30, s28")
    for q in range(4):
        a(f"s_xor_b32 s31, s3, {q}"); a("s_add_u32 s31, s31, s30"); a("s_lshl_b32 s31, s31, 11"); a(f"s_add_u32 s31, s31, {WS_Q}")
        a(f"buffer_load_dwordx4 v[{AQ+8*q}:{AQ+8*q+3}], v2, s[8:11], s31 offen {ld_flags}")
        a(f"buffer_load_dwordx4 v[{AQ+8*q+4}:{AQ+8*q+7}], v2, s[8:11], s31 offen offset:1024 {ld_flags}")
    a("v_lshlrev_b32 v3, 2, v1")
    a("s_lshl_b32 s31, s6, 8"); a(f"s_add_u32 s31, s31, {WS_KMAX}")
    a(f"buffer_load_dword v4, v3, s[8:11], s31 offen {ld_flags}")
    kv_load(a, 0, ld_flags); kv_load(a, 1, ld_flags)

def kv_load(a, t, ld_flags=""):
    b = AKV + 16*(t % 3)
    a(f"s_add_u32 s42, s40, {2048*t}"); a(f"s_add_u32 s43, s41, {2048*t}")
    a(f"buffer_load_dwordx4 v[{b}:{b+3}], v2, s[8:11], s42 offen {ld_flags}")
    a(f"buffer_load_dwordx4 v[{b+4}:{b+7}], v2, s[8:11], s42 offen offset:1024 {ld_flags}")
    a(f"buffer_load_dwordx4 v[{b+8}:{b+11}], v2, s[8:11], s43 offen {ld_flags}")
    a(f"buffer_load_dwordx4 v[{b+12}:{b+15}], v2, s[8:11], s43 offen offset:1024 {ld_flags}")

def attn_bound(a):
    a("s_waitcnt vmcnt(8)")
    for sh in (1, 2, 4, 8):
        a(f"v_max_f32_dpp v4, v4, v4 row_ror:{sh} row_mask:0xf bank_mask:0xf")
    for i in range(4):
        a(f"v_readlane_b32 s{32+i}, v4, {16*i}")
    a("s_max_u32 s32, s32, s33"); a("s_max_u32 s34, s34, s35"); a("s_max_u32 s32, s32, s34")
    a("v_cmp_lt_u32 vcc, 31, v1")
    for q in range(4):
        b = AQ + 8*q
        a("v_mov_b32 v5, 0")
        for r in range(8):
            a(f"v_lshlrev_b32 v6, 16, v{b+r}")
            a(f"v_and_b32 v7, 0xffff0000, v{b+r}")
            a("v_fmac_f32 v5, v6, v6")
            a("v_fmac_f32 v5, v7, v7")
        a("v_mov_b32 v6, v5")
        a("v_permlane32_swap_b32 v5, v6")
        a("v_add_f32 v5, v5, v6")
        a("v_mul_f32 v5, s32, v5")
        a("v_sqrt_f32 v5, v5")
        a(f"v_mul_f32 v5, {f32bits(-1.02):#x}, v5")
        a("v_mov_b32 v6, 0")
        a("v_cvt_pk_bf16_f32 v5, v5, v6")
        a(f"v_cndmask_b32 v{b+6}, v{b+6}, v5, vcc")

def attn_main(a, ld_flags=""):
    NT = 16
    for i in range(64): a(f"v_mov_b32 v{AO+i}, 0")
    def K(t): return AKV + 16*(t % 3)
    def qk1(n):
        t, q = divmod(n, 4); S = AS + 16*(n % 2)
        a(f"v_mfma_f32_32x32x16_bf16 v[{S}:{S+15}], v[{K(t)}:{K(t)+3}], v[{AQ+8*q}:{AQ+8*q+3}], 0")
    def qk2(n):
        t, q = divmod(n, 4); S = AS + 16*(n % 2)
        a(f"v_mfma_f32_32x32x16_bf16 v[{S}:{S+15}], v[{K(t)+4}:{K(t)+7}], v[{AQ+8*q+4}:{AQ+8*q+7}], v[{S}:{S+15}]")
    def pv(n, j):
        t, q = divmod(n, 4); O = AO + 16*q
        a(f"v_mfma_f32_32x32x16_bf16 v[{O}:{O+15}], v[{K(t)+8+4*j}:{K(t)+8+4*j+3}], v[{AP+4*j}:{AP+4*j+3}], v[{O}:{O+15}]")
    a("s_waitcnt vmcnt(4)")
    qk1(0); qk2(0)
    N = 4*NT
    for n in range(N):
        t, q = divmod(n, 4); S = AS + 16*(n % 2)
        for g in range(4):
            for i in range(4):
                a(f"v_exp_f32 v{S+4*g+i}, v{S+4*g+i}")
                if g == 0 and i == 1:
                    if n > 0: pv(n-1, 1)
                    if q == 0 and t + 2 < NT: kv_load(a, t+2, ld_flags)
                    if q == 3 and t + 1 < NT:
                        a(f"s_waitcnt vmcnt({4 if t + 2 < NT else 0})")
            a(f"v_cvt_pk_bf16_f32 v{AP+2*g}, v{S+4*g}, v{S+4*g+1}")
            a(f"v_cvt_pk_bf16_f32 v{AP+2*g+1}, v{S+4*g+2}, v{S+4*g+3}")
            if g == 0 and n+1 < N: qk1(n+1)
            if g == 1 and n+1 < N: qk2(n+1)
            if g == 2: pv(n, 0)
    pv(N-1, 1)

def attn_reduce_store(a, store_flags=""):
    a("v_lshlrev_b32 v2, 4, v1")
    for u in range(1, 4):
        a(f"s_xor_b32 s28, s3, {u}"); a("s_mul_i32 s28, s28, 12288"); a(f"s_add_u32 s28, s28, {LDS_ATT + (u-1)*4096}")
        a("v_add_u32 v3, s28, v2")
        for i in range(4):
            a(f"ds_write_b128 v3, v[{AO+16*u+4*i}:{AO+16*u+4*i+3}] offset:{1024*i}")
    a("s_mul_i32 s28, s3, 12288"); a(f"s_add_u32 s28, s28, {LDS_ATT}")
    a("v_add_u32 v3, s28, v2")
    a("s_waitcnt lgkmcnt(0)")
    a("s_barrier")
    for i in range(12):
        a(f"ds_read_b128 v[{112+4*i}:{112+4*i+3}], v3 offset:{1024*i}")
    a("s_waitcnt lgkmcnt(0)")
    for u in range(3):
        for r in range(16):
            a(f"v_add_f32 v{AO+r}, v{AO+r}, v{112+16*u+r}")
    a(f"v_mov_b32 v5, v{AO+12}"); a(f"v_mov_b32 v6, v{AO+12}")
    a("v_permlane32_swap_b32 v5, v6")
    a("v_mov_b32 v10, v6")
    a("v_rcp_f32 v6, v6")
    for r in range(16): a(f"v_mul_f32 v{AO+r}, v{AO+r}, v6")
    for q in range(8): a(f"v_cvt_pk_bf16_f32 v{16+q}, v{AO+2*q}, v{AO+2*q+1}")
    a("v_cmp_lt_u32 vcc, 31, v1")
    a("v_mov_b32 v4, 0")
    a("v_cndmask_b32 v22, v22, v4, vcc"); a("v_cndmask_b32 v23, v23, v4, vcc")
    a("s_lshl_b32 s28, s7, 2"); a("s_add_u32 s28, s28, s3"); a("s_lshl_b32 s28, s28, 4"); a("s_add_u32 s28, s28, s6")
    a("s_lshl_b32 s28, s28, 11"); a(f"s_add_u32 s28, s28, {WS_O}")
    a(f"buffer_store_dwordx4 v[16:19], v2, s[8:11], s28 offen {store_flags}")
    a(f"buffer_store_dwordx4 v[20:23], v2, s[8:11], s28 offen offset:1024 {store_flags}")

def k_attn(a, name):
    kernel_begin(a, name, 256)
    a("s_waitcnt lgkmcnt(0)")
    attn_prologue(a)
    attn_bound(a)
    attn_main(a)
    attn_reduce_store(a)
    a("s_waitcnt vmcnt(0)")
    kernel_end(a, name)
    return kdesc(name, 200)
```

```python
from common import *
from k_qkv import f32bits

FT, FACC, FW, FTMP = 16, 128, 160, 176
SLOT = 28672
C1 = -2.0*1.4426950408889634*0.7978845608028654
C2 = C1*0.044715

def ffn1_dma(a, c):
    slot = c % 5
    a(f"s_add_u32 s28, s6, {c*SLOT}")
    a(f"s_mul_i32 s29, s3, 7168"); a("s_add_u32 s28, s28, s29"); a(f"s_add_u32 s29, s29, {slot*SLOT}")
    a("s_mov_b32 m0, s29")
    for i in range(7):
        a(f"buffer_load_dwordx4 v2, s[8:11], s28 offen lds")
        if i < 6:
            a("s_add_u32 m0, m0, 1024"); a("s_add_u32 s28, s28, 1024")

def gelu_epilogue(c, st_flags=""):
    A = FACC + 16*(c % 2); T = FTMP
    L = []
    for r in range(8):
        g, u, t = A + r, A + 8 + r, T + r
        L.append(f"v_mul_f32 v{t}, v{g}, v{g}")
        L.append(f"v_fma_f32 v{t}, v{t}, s45, v14")
        L.append(f"v_mul_f32 v{t}, v{t}, v{g}")
        L.append(f"v_exp_f32 v{t}, v{t}")
        L.append(f"v_mul_f32 v{g}, v{g}, v{u}")
        L.append(f"v_add_f32 v{t}, 1.0, v{t}")
        L.append(f"v_rcp_f32 v{t}, v{t}")
        L.append(None)
    out = []
    per = [L[8*r:8*r+7] for r in range(8)]
    for r in range(0, 8, 2):
        x, y = per[r], per[r+1]
        for i in range(7):
            out.append(x[i]); out.append(y[i])
        out.append(f"v_mul_f32 v{A+r}, v{A+r}, v{T+r}")
        out.append(f"v_mul_f32 v{A+r+1}, v{A+r+1}, v{T+r+1}")
        out.append(f"v_cvt_pk_bf16_f32 v{T+8+r//2}, v{A+r}, v{A+r+1}")
    out.append(f"s_add_u32 s28, s7, {c*1024}")
    out.append(f"buffer_store_dwordx4 v[{T+8}:{T+11}], v2, s[8:11], s28 offen {st_flags}")
    return out

def ffn1_tile(a, c, pending):
    slot = c % 5; A = FACC + 16*(c % 2)
    base = slot*SLOT
    def rd(s):
        o = base + s*1024
        av = "v3" if o < 65536 else ("v4" if o < 131072 else "v5")
        a(f"ds_read_b128 v[{FW+4*(s%4)}:{FW+4*(s%4)+3}], {av} offset:{o % 65536}")
    for s in range(3): rd(s)
    per = -(-len(pending)//26) if pending else 0
    for s in range(28):
        if s + 3 < 28: rd(s+3)
        a(f"s_waitcnt lgkmcnt({min(3, 27 - s)})")
        cin = f"v[{A}:{A+15}]" if s > 0 else "0"
        a(f"v_mfma_f32_32x32x16_bf16 v[{A}:{A+15}], v[{FW+4*(s%4)}:{FW+4*(s%4)+3}], v[{FT+4*s}:{FT+4*s+3}], {cin}")
        if s >= 1:
            for _ in range(per):
                if pending: a(pending.pop(0))
    while pending: a(pending.pop(0))

def k_ffn1(a, name):
    kernel_begin(a, name, 256)
    a("s_waitcnt lgkmcnt(0)")
    a("s_lshr_b32 s28, s5, 1"); a(f"s_mul_i32 s6, s28, {7*SLOT}"); a(f"s_add_u32 s6, s6, {WS_WGU}")
    a("s_and_b32 s29, s5, 1"); a("s_lshl_b32 s29, s29, 2"); a("s_lshl_b32 s30, s4, 3"); a("s_add_u32 s29, s29, s30"); a("s_add_u32 s29, s29, s3"); a("s_mov_b32 s46, s29")
    a("s_mul_i32 s30, s29, 112"); a("s_mul_i32 s31, s28, 7"); a("s_add_u32 s30, s30, s31"); a("s_lshl_b32 s7, s30, 10"); a(f"s_add_u32 s7, s7, {WS_HH}")
    a("v_lshlrev_b32 v2, 4, v1")
    a("v_add_u32 v4, 0x10000, v2"); a("v_add_u32 v5, 0x20000, v2"); a("v_mov_b32 v3, v2")
    for c in range(5): ffn1_dma(a, c)
    a(f"s_mul_i32 s30, s46, {SLOT}"); a(f"s_add_u32 s30, s30, {WS_H2}")
    for s in range(28):
        if s % 4 == 0 and s > 0: a("s_add_u32 s30, s30, 4096")
        a(f"buffer_load_dwordx4 v[{FT+4*s}:{FT+4*s+3}], v2, s[8:11], s30 offen offset:{(s%4)*1024}")
    a(f"s_mov_b32 s45, {f32bits(C2):#x}"); a(f"v_mov_b32 v14, {f32bits(C1):#x}")
    a("s_waitcnt vmcnt(0)")
    a("s_barrier")
    pend = []
    for c in range(7):
        if c == 2:
            a("s_barrier")
            ffn1_dma(a, 5); ffn1_dma(a, 6)
        if c == 5:
            a("s_waitcnt vmcnt(0)"); a("s_barrier")
        ffn1_tile(a, c, pend)
        pend = gelu_epilogue(c)
    a("s_nop 15")
    for x in pend: a(x)
    a("s_waitcnt vmcnt(0)")
    kernel_end(a, name)
    return kdesc(name, 192)
```

```python
from common import *
from k_qkv import f32bits
from k_prep import magic

KACC = 16
KRING = 80
LDS_RED = 0

def tile_ids(a):
    a(f"s_mul_hi_u32 s6, s5, {magic(7, 64)}")
    a("s_mul_i32 s28, s6, 7"); a("s_sub_u32 s7, s5, s28")
    a("s_lshl_b32 s28, s4, 3"); a("s_lshl_b32 s29, s6, 1"); a("s_add_u32 s28, s28, s29")
    a("s_lshr_b32 s29, s3, 1")
    a("s_add_u32 s34, s28, s29"); a("s_xor_b32 s29, s29, 1"); a("s_add_u32 s35, s28, s29")
    a("s_lshl_b32 s28, s7, 1")
    a("s_and_b32 s29, s3, 1")
    a("s_add_u32 s36, s28, s29"); a("s_xor_b32 s29, s29, 1"); a("s_add_u32 s37, s28, s29")

def ksplit_gemm(a, nks, tbase, wbase, tflags="", wflags="", depth=4):
    TS = 4*nks*1024
    a("v_lshlrev_b32 v2, 4, v1")
    a(f"s_mul_i32 s28, s3, {nks*1024}")
    for i, (sr, base) in enumerate(((34, tbase), (35, tbase), (36, wbase), (37, wbase))):
        a(f"s_mul_i32 s{40+i}, s{sr}, {TS}"); a(f"s_add_u32 s{40+i}, s{40+i}, s28"); a(f"s_add_u32 s{40+i}, s{40+i}, {base}")
    def load(s):
        b = KRING + 16*(s % depth)
        off = (s % 4)*1024
        if s % 4 == 0 and s > 0:
            for i in range(4): a(f"s_add_u32 s{40+i}, s{40+i}, 4096")
        for i in range(4):
            fl = tflags if i < 2 else wflags
            a(f"buffer_load_dwordx4 v[{b+4*i}:{b+4*i+3}], v2, s[8:11], s{40+i} offen offset:{off} {fl}")
    for s in range(min(depth, nks)): load(s)
    issued = min(depth, nks)
    for s in range(nks):
        a(f"s_waitcnt vmcnt({4*(issued - s - 1)})")
        b = KRING + 16*(s % depth)
        for ur in range(2):
            for uc in range(2):
                d = KACC + 16*(2*ur+uc)
                cin = f"v[{d}:{d+15}]" if s > 0 else "0"
                a(f"v_mfma_f32_32x32x16_bf16 v[{d}:{d+15}], v[{b+8+4*uc}:{b+8+4*uc+3}], v[{b+4*ur}:{b+4*ur+3}], {cin}")
        if issued < nks:
            load(issued); issued += 1

def ksplit_reduce(a):
    a("v_lshlrev_b32 v2, 4, v1")
    for u in range(1, 4):
        a(f"s_xor_b32 s28, s3, {u}"); a("s_mul_i32 s28, s28, 12288"); a(f"s_add_u32 s28, s28, {LDS_RED + (u-1)*4096}")
        a("v_add_u32 v3, s28, v2")
        for i in range(4):
            a(f"ds_write_b128 v3, v[{KACC+16*u+4*i}:{KACC+16*u+4*i+3}] offset:{1024*i}")
    a("s_mul_i32 s28, s3, 12288"); a(f"s_add_u32 s28, s28, {LDS_RED}")
    a("v_add_u32 v3, s28, v2")
    a("s_waitcnt lgkmcnt(0)")
    a("s_barrier")
    for i in range(12):
        a(f"ds_read_b128 v[{32+4*i}:{32+4*i+3}], v3 offset:{1024*i}")
    a("s_waitcnt lgkmcnt(0)")
    for u in range(3):
        for r in range(16):
            a(f"v_add_f32 v{KACC+r}, v{KACC+r}, v{32+16*u+r}")

def load_modvec(a, dst, section, flags=""):
    a("s_lshl_b32 s28, s36, 7"); a(f"s_add_u32 s28, s28, {WS_MOD + section*1792}")
    for jq in range(4):
        a(f"buffer_load_dwordx4 v[{dst+4*jq}:{dst+4*jq+3}], v4, s[8:11], s28 offen offset:{32*jq} {flags}")

def wo_prefetch_epilogue_inputs(a):
    a("v_lshrrev_b32 v3, 5, v1"); a("v_lshlrev_b32 v4, 4, v3")
    a("v_and_b32 v5, 31, v1"); a("v_mul_u32_u24 v5, 896, v5"); a("v_lshl_add_u32 v5, v3, 3, v5")
    a(f"s_mul_i32 s28, s34, {32*896}"); a("s_lshl_b32 s29, s36, 6"); a("s_add_u32 s28, s28, s29")
    for jq in range(4):
        a(f"buffer_load_dwordx2 v[{160+2*jq}:{161+2*jq}], v5, s[12:15], s28 offen offset:{16*jq}")
    load_modvec(a, 168, 2); load_modvec(a, 184, 4); load_modvec(a, 200, 3)

def wo_epilogue(a, st_flags="sc1", ld_flags="sc1", h2_flags=""):
    A = KACC
    for q in range(8):
        a(f"v_lshlrev_b32 v{32+2*q}, 16, v{160+q}")
        a(f"v_and_b32 v{33+2*q}, 0xffff0000, v{160+q}")
    for r in range(16): a(f"v_fmac_f32 v{32+r}, v{168+r}, v{A+r}")
    for q in range(8): a(f"v_cvt_pk_bf16_f32 v{48+q}, v{32+2*q}, v{33+2*q}")
    for q in range(8):
        a(f"v_lshlrev_b32 v{32+2*q}, 16, v{48+q}")
        a(f"v_and_b32 v{33+2*q}, 0xffff0000, v{48+q}")
    a("v_lshlrev_b32 v2, 4, v1")
    a("s_mul_i32 s28, s34, 14"); a("s_add_u32 s28, s28, s36")
    a("s_lshl_b32 s29, s28, 11"); a(f"s_add_u32 s29, s29, {WS_X1}")
    a(f"buffer_store_dwordx4 v[48:51], v2, s[8:11], s29 offen {h2_flags}")
    a(f"buffer_store_dwordx4 v[52:55], v2, s[8:11], s29 offen offset:1024 {h2_flags}")
    a("v_mov_b32 v6, v32"); a("v_mul_f32 v7, v32, v32")
    for r in range(1, 16):
        a(f"v_add_f32 v6, v6, v{32+r}"); a(f"v_fmac_f32 v7, v{32+r}, v{32+r}")
    a("v_mov_b32 v8, v6"); a("v_mov_b32 v9, v7")
    a("v_permlane32_swap_b32 v6, v8"); a("v_permlane32_swap_b32 v7, v9")
    a("v_add_f32 v6, v6, v8"); a("v_add_f32 v7, v7, v9")
    a("v_and_b32 v5, 31, v1"); a("v_lshlrev_b32 v5, 3, v5")
    a("s_lshl_b32 s29, s28, 8"); a(f"s_add_u32 s29, s29, {WS_STAT}")
    a("v_cmp_gt_u32 vcc, 32, v1")
    a("s_and_saveexec_b64 s[30:31], vcc")
    a(f"buffer_store_dwordx2 v[6:7], v5, s[8:11], s29 offen {st_flags}")
    a("s_mov_b64 exec, s[30:31]")
    a("v_lshrrev_b32 v3, 5, v1"); a("v_mul_u32_u24 v3, 1792, v3"); a("v_add_u32 v5, v5, v3")
    a("s_mul_i32 s29, s34, 3584"); a(f"s_add_u32 s29, s29, {WS_STAT}")
    a("s_mov_b32 s38, 0")
    Lp, Ld = a.uid("stat_poll"), a.uid("stat_done")
    a.label(Lp)
    for i in range(7):
        a(f"buffer_load_dwordx2 v[{64+2*i}:{65+2*i}], v5, s[8:11], s29 offen offset:{256*i} {ld_flags}")
    a(f"s_mov_b32 s39, {SENT}")
    a("s_waitcnt vmcnt(0)")
    a("v_cmp_eq_u32 vcc, s39, v64")
    for i in range(1, 7):
        a(f"v_cmp_eq_u32 s[30:31], s39, v{64+2*i}")
        a("s_or_b64 vcc, vcc, s[30:31]")
    a(f"s_cbranch_vccz {Ld}")
    a("s_add_u32 s38, s38, 1")
    a("s_cmp_lt_u32 s38, 0x40000")
    a(f"s_cbranch_scc1 {Lp}")
    a.label(Ld)
    for i in range(1, 7):
        a(f"v_add_f32 v64, v64, v{64+2*i}"); a(f"v_add_f32 v65, v65, v{65+2*i}")
    a("v_mov_b32 v8, v64"); a("v_mov_b32 v9, v65")
    a("v_permlane32_swap_b32 v64, v8"); a("v_permlane32_swap_b32 v65, v9")
    a("v_add_f32 v6, v64, v8"); a("v_add_f32 v7, v65, v9")
    a(f"v_mul_f32 v6, {f32bits(1/448):#x}, v6"); a(f"v_mul_f32 v7, {f32bits(1/448):#x}, v7")
    a("v_fma_f32 v7, -v6, v6, v7"); a("v_max_f32 v7, 0, v7"); a(f"v_add_f32 v7, {f32bits(1e-5):#x}, v7")
    a("v_rsq_f32 v7, v7")
    a("v_mul_f32 v6, v6, v7")
    for r in range(16): a(f"v_fma_f32 v{32+r}, v{32+r}, v7, -v6")
    for r in range(16): a(f"v_fma_f32 v{32+r}, v{32+r}, v{184+r}, v{200+r}")
    for q in range(8): a(f"v_cvt_pk_bf16_f32 v{56+q}, v{32+2*q}, v{33+2*q}")
    a("s_mul_i32 s28, s34, 28"); a("s_lshl_b32 s29, s36, 1"); a("s_add_u32 s28, s28, s29")
    a("s_lshl_b32 s28, s28, 10"); a(f"s_add_u32 s28, s28, {WS_H2}")
    a(f"buffer_store_dwordx4 v[56:59], v2, s[8:11], s28 offen {h2_flags}")
    a(f"buffer_store_dwordx4 v[60:63], v2, s[8:11], s28 offen offset:1024 {h2_flags}")

def k_wo(a, name):
    kernel_begin(a, name, 256)
    a("s_cmp_ge_u32 s5, 28"); a(f"s_cbranch_scc1 {name}_exit")
    srd(a, 12, KA_X, SZ_X)
    a("s_waitcnt lgkmcnt(0)")
    tile_ids(a)
    wo_prefetch_epilogue_inputs(a)
    a("s_waitcnt vmcnt(0)")
    ksplit_gemm(a, 8, WS_O, WS_WO)
    ksplit_reduce(a)
    wo_epilogue(a)
    a("s_waitcnt vmcnt(0)")
    kernel_end(a, name)
    return kdesc(name, 224)

def ffn2_epilogue(a):
    F = KACC
    a("v_lshlrev_b32 v2, 4, v1")
    a("v_lshrrev_b32 v3, 5, v1"); a("v_lshlrev_b32 v4, 4, v3")
    a("s_mul_i32 s28, s34, 14"); a("s_add_u32 s28, s28, s36")
    a("s_lshl_b32 s29, s28, 11"); a(f"s_add_u32 s29, s29, {WS_X1}")
    a("buffer_load_dwordx4 v[160:163], v2, s[8:11], s29 offen")
    a("buffer_load_dwordx4 v[164:167], v2, s[8:11], s29 offen offset:1024")
    load_modvec(a, 168, 5)
    a("s_waitcnt vmcnt(0)")
    for q in range(8):
        a(f"v_lshlrev_b32 v{32+2*q}, 16, v{160+q}")
        a(f"v_and_b32 v{33+2*q}, 0xffff0000, v{160+q}")
    for r in range(16): a(f"v_fmac_f32 v{32+r}, v{168+r}, v{F+r}")
    for q in range(8): a(f"v_cvt_pk_bf16_f32 v{48+q}, v{32+2*q}, v{33+2*q}")
    for b in (48, 52):
        a(f"v_permlane32_swap_b32 v{b}, v{b+2}"); a(f"v_permlane32_swap_b32 v{b+1}, v{b+3}")
    a("v_and_b32 v5, 31, v1"); a("v_mul_u32_u24 v5, 896, v5"); a("v_lshl_add_u32 v5, v3, 4, v5")
    a(f"s_mul_i32 s28, s34, {32*896}"); a("s_lshl_b32 s29, s36, 6"); a("s_add_u32 s28, s28, s29")
    a("buffer_store_dwordx4 v[48:51], v5, s[12:15], s28 offen")
    a("buffer_store_dwordx4 v[52:55], v5, s[12:15], s28 offen offset:32")

def k_ffn2(a, name):
    kernel_begin(a, name, 256)
    a("s_cmp_ge_u32 s5, 28"); a(f"s_cbranch_scc1 {name}_exit")
    srd(a, 12, KA_OUT, SZ_OUT)
    a("s_waitcnt lgkmcnt(0)")
    tile_ids(a)
    ksplit_gemm(a, 28, WS_HH, WS_WD)
    ksplit_reduce(a)
    ffn2_epilogue(a)
    a("s_waitcnt vmcnt(0)")
    kernel_end(a, name)
    return kdesc(name, 224)
```

```python
from common import *

def magic(d, nmax):
    m = (2**32 + d - 1)//d
    for n in range(nmax):
        assert (n*m) >> 32 == n//d
    return m

def load_frag_d16(a, dst, voff, srdq, sbase, stride, tmp_s, zero_pad=None):
    for e in range(8):
        ro = ((e & 3) + 8*(e >> 2))*stride
        a(f"s_add_u32 s{tmp_s}, s{sbase}, {ro}")
        if zero_pad is not None and e == 4:
            a(f"s_mov_b64 exec, s[{zero_pad}:{zero_pad+1}]")
        a(f"buffer_load_ushort v{dst + e}, v{voff}, s[{srdq}:{srdq+3}], s{tmp_s} offen")
    if zero_pad is not None:
        a("s_mov_b64 exec, -1")

def pack_frag(a, src, dst):
    for q in range(4):
        a(f"v_lshl_or_b32 v{dst+q}, v{src+2*q+1}, 16, v{src+2*q}")

def prep_weights(a):
    srd(a, 12, KA_WO, SZ_WO); srd(a, 16, KA_WG, SZ_WG); srd(a, 20, KA_WU, SZ_WG); srd(a, 24, KA_WD, SZ_WD)
    a("s_lshl_b32 s28, s2, 2")
    a("s_add_u32 s28, s28, s3")
    a("v_and_b32 v2, 31, v1")
    a("v_lshrrev_b32 v3, 5, v1")
    a("v_lshlrev_b32 v4, 4, v1")
    a("v_mul_u32_u24 v5, 3584, v3")
    a("v_lshl_add_u32 v5, v2, 1, v5")
    a("v_mul_u32_u24 v6, 14336, v3")
    a("v_and_b32 v7, 15, v2")
    a("v_lshl_add_u32 v6, v7, 1, v6")
    a("s_waitcnt lgkmcnt(0)")
    L = a.uid("prep_wo_done")
    a("s_cmp_ge_u32 s28, 448")
    a(f"s_cbranch_scc1 {L}")
    a("s_lshr_b32 s29, s28, 5")
    a("s_and_b32 s30, s28, 31")
    a("s_lshr_b32 s31, s30, 1")
    a("s_and_b32 s30, s30, 1")
    a("s_mul_i32 s31, s31, 28")
    a("s_lshl_b32 s32, s30, 4")
    a("s_add_u32 s31, s31, s32")
    a("s_mul_i32 s31, s31, 896")
    a("s_lshl_b32 s29, s29, 6")
    a("s_add_u32 s31, s31, s29")
    a("s_cmp_eq_u32 s30, 1")
    a("s_cselect_b32 s35, 0, -1")
    a("s_mov_b32 s34, -1")
    for i in range(8): a(f"v_mov_b32 v{16+i}, 0")
    load_frag_d16(a, 16, 5, 12, 31, 896, 33, zero_pad=34)
    a("s_lshl_b32 s29, s28, 10")
    a(f"s_add_u32 s29, s29, {WS_WO}")
    a("s_waitcnt vmcnt(0)")
    pack_frag(a, 16, 8)
    a("buffer_store_dwordx4 v[8:11], v4, s[8:11], s29 offen")
    a.label(L)
    Lp, Ld = a.uid("prep_gu"), a.uid("prep_gu_done")
    a("s_mov_b32 s36, s28")
    a("s_mov_b32 s38, 0x0000ffff"); a("s_mov_b32 s39, 0x0000ffff")
    a("s_mov_b32 s40, 0xffff0000"); a("s_mov_b32 s41, 0xffff0000")
    a.label(Lp)
    a("s_cmp_ge_u32 s36, 3136")
    a(f"s_cbranch_scc1 {Ld}")
    a(f"s_mul_hi_u32 s29, s36, {magic(28, 4096)}")
    a("s_mul_i32 s30, s29, 28")
    a("s_sub_u32 s30, s36, s30")
    a(f"s_mul_i32 s31, s30, {16*3584}")
    a("s_lshl_b32 s29, s29, 5")
    a("s_add_u32 s31, s31, s29")
    a("s_waitcnt vmcnt(0)")
    a("s_mov_b64 exec, s[38:39]")
    load_frag_d16(a, 16, 6, 16, 31, 3584, 33)
    a("s_mov_b64 exec, s[40:41]")
    load_frag_d16(a, 16, 6, 20, 31, 3584, 33)
    a("s_mov_b64 exec, -1")
    a("s_lshl_b32 s29, s36, 10")
    a(f"s_add_u32 s29, s29, {WS_WGU}")
    a("s_waitcnt vmcnt(0)")
    pack_frag(a, 16, 8)
    a("buffer_store_dwordx4 v[8:11], v4, s[8:11], s29 offen")
    a("s_add_u32 s36, s36, 1024")
    a(f"s_branch {Lp}")
    a.label(Ld)
    Lp, Ld = a.uid("prep_wd"), a.uid("prep_wd_done")
    a("s_mov_b32 s36, s28")
    a.label(Lp)
    a("s_cmp_ge_u32 s36, 1568")
    a(f"s_cbranch_scc1 {Ld}")
    a(f"s_mul_hi_u32 s29, s36, {magic(112, 4096)}")
    a("s_mul_i32 s30, s29, 112")
    a("s_sub_u32 s30, s36, s30")
    a(f"s_mul_i32 s31, s30, {16*896}")
    a("s_lshl_b32 s29, s29, 6")
    a("s_add_u32 s31, s31, s29")
    a("s_waitcnt vmcnt(0)")
    load_frag_d16(a, 16, 5, 24, 31, 896, 33)
    a("s_lshl_b32 s29, s36, 10")
    a(f"s_add_u32 s29, s29, {WS_WD}")
    a("s_waitcnt vmcnt(0)")
    pack_frag(a, 16, 8)
    a("buffer_store_dwordx4 v[8:11], v4, s[8:11], s29 offen")
    a("s_add_u32 s36, s36, 1024")
    a(f"s_branch {Lp}")
    a.label(Ld)
    a("s_waitcnt vmcnt(0)")

def mod_tile(a, sT, lds_base, out_soff_extra=0, store_flags=""):
    a("v_lshrrev_b32 v2, 2, v0")
    a("v_and_b32 v3, 3, v0")
    a("v_mul_u32_u24 v4, 5376, v2")
    a("v_lshl_add_u32 v4, v3, 4, v4")
    a(f"s_lshl_b32 s29, s{sT}, 6")
    a("v_lshlrev_b32 v5, 1, v2")
    for i in range(7):
        a(f"s_add_u32 s30, s29, {i*64*5376}")
        a(f"buffer_load_dwordx4 v[{16+4*i}:{19+4*i}], v4, s[16:19], s30 offen")
    for i in range(7):
        a(f"buffer_load_ushort v{8+i}, v5, s[12:15], 0 offen offset:{i*128}")
    for i in range(8): a(f"v_mov_b32 v{48+i}, 0")
    a("s_waitcnt vmcnt(0)")
    for i in range(7):
        c = 8+i
        a(f"v_lshlrev_b32 v{c}, 16, v{c}")
        a(f"v_mul_f32 v44, 0xbfb8aa3b, v{c}")
        a("v_exp_f32 v44, v44")
        a("v_add_f32 v44, 1.0, v44")
        a("v_rcp_f32 v44, v44")
        a(f"v_mul_f32 v{c}, v{c}, v44")
        a(f"v_cvt_pk_bf16_f32 v{c}, v{c}, v{c}")
        a(f"v_and_b32 v{c}, 0xffff0000, v{c}")
        for q in range(4):
            w = 16+4*i+q
            a(f"v_lshlrev_b32 v44, 16, v{w}")
            a(f"v_and_b32 v45, 0xffff0000, v{w}")
            a(f"v_fmac_f32 v{48+2*q}, v{c}, v44")
            a(f"v_fmac_f32 v{48+2*q+1}, v{c}, v45")
    for sh in (4, 8):
        for q in range(8):
            a(f"v_add_f32_dpp v{48+q}, v{48+q}, v{48+q} row_ror:{sh} row_mask:0xf bank_mask:0xf")
    a("v_lshrrev_b32 v6, 4, v0")
    a("v_lshlrev_b32 v6, 7, v6")
    a(f"v_lshl_add_u32 v6, v3, 5, v6")
    a("v_and_b32 v7, 12, v0")
    a("v_cmp_eq_u32 vcc, 0, v7")
    a("s_and_saveexec_b64 s[32:33], vcc")
    a(f"ds_write_b128 v6, v[48:51] offset:{lds_base}")
    a(f"ds_write_b128 v6, v[52:55] offset:{lds_base+16}")
    a("s_mov_b64 exec, s[32:33]")
    a("s_waitcnt lgkmcnt(0)")
    a("s_barrier")
    a("v_cmp_gt_u32 vcc, 32, v0")
    a("s_and_saveexec_b64 s[32:33], vcc")
    Ls = a.uid("mod_skip")
    a(f"s_cbranch_execz {Ls}")
    a("v_lshlrev_b32 v6, 2, v0")
    for i in range(16):
        a(f"ds_read_b32 v{16+i}, v6 offset:{lds_base + i*128}")
    a("s_waitcnt lgkmcnt(0)")
    for st in (8, 4, 2, 1):
        for i in range(st):
            a(f"v_add_f32 v{16+i}, v{16+i}, v{16+i+st}")
    a("v_cvt_pk_bf16_f32 v16, v16, v16")
    a("v_and_b32 v16, 0xffff0000, v16")
    a(f"s_mul_hi_u32 s30, s{sT}, {magic(14, 128)}")
    a("s_cmp_eq_u32 s30, 1")
    a("s_cselect_b32 s31, 1, 0")
    a("s_cmp_eq_u32 s30, 4")
    a("s_cselect_b32 s31, 1, s31")
    a("s_cmp_eq_u32 s31, 1")
    Ln = a.uid("mod_noadd")
    a(f"s_cbranch_scc0 {Ln}")
    a("v_add_f32 v16, 1.0, v16")
    a("v_cvt_pk_bf16_f32 v16, v16, v16")
    a("v_and_b32 v16, 0xffff0000, v16")
    a.label(Ln)
    a(f"s_lshl_b32 s30, s{sT}, 7")
    a(f"s_add_u32 s30, s30, {WS_MOD + out_soff_extra}")
    a(f"buffer_store_dword v16, v6, s[8:11], s30 offen {store_flags}")
    a.label(Ls)
    a("s_mov_b64 exec, s[32:33]")

def k_prep(a, name):
    kernel_begin(a, name, 256)
    prep_weights(a)
    L = a.uid("noclear")
    a("s_cmp_lt_u32 s2, 200")
    a(f"s_cbranch_scc1 {L}")
    a("s_sub_u32 s29, s2, 200")
    a("s_lshl_b32 s29, s29, 12")
    a(f"s_add_u32 s29, s29, {WS_STAT}")
    a("v_lshlrev_b32 v2, 4, v0")
    for i in range(4): a(f"v_mov_b32 v{8+i}, {SENT}")
    a("buffer_store_dwordx4 v[8:11], v2, s[8:11], s29 offen")
    a.label(L)
    L = a.uid("nomod")
    a("s_cmp_ge_u32 s2, 84")
    a(f"s_cbranch_scc1 {L}")
    srd(a, 12, KA_C, SZ_C); srd(a, 16, KA_WMOD, SZ_WMOD)
    a("s_waitcnt lgkmcnt(0)")
    a("s_mov_b32 s28, s2")
    mod_tile(a, 28, 0)
    a.label(L)
    a("s_waitcnt vmcnt(0)")
    kernel_end(a, name)
    return kdesc(name, 64)
```

```python
from common import *
from k_prep import magic

LDS_W = 0; SEG = 50176
LDS_MODS = 3*SEG
LDS_STAT = LDS_MODS + 3584
LDS_QKV_TOTAL = LDS_STAT + 1024
QSCALE = (28 ** -0.5) * 1.4426950408889634

def f32bits(x):
    import struct
    return struct.unpack("<I", struct.pack("<f", x))[0]

XP, XF, ACC = 16, 72, 184
V_WO, V_WF, V_MOD = 232, 235, 238

def qkv_issue_loads(a):
    a("s_and_b32 s6, s3, 1")
    a("s_lshr_b32 s7, s3, 1")
    a("v_and_b32 v2, 31, v1")
    a("v_lshrrev_b32 v3, 5, v1")
    a("v_mul_u32_u24 v4, 896, v2")
    a("v_lshl_add_u32 v4, v3, 4, v4")
    a("s_lshl_b32 s28, s5, 6")
    a("s_lshl_b32 s29, s6, 5")
    a("s_add_u32 s28, s28, s29")
    a("s_mul_i32 s28, s28, 896")
    a("s_mul_i32 s29, s7, 448")
    a("s_add_u32 s28, s28, s29")
    for s in range(14):
        a(f"buffer_load_dwordx4 v[{XP+4*s}:{XP+4*s+3}], v4, s[12:15], s28 offen offset:{32*s}")
    for b in range(7):
        a(f"v_add_u32 v12, {64*b}, v1")
        a(f"v_mul_u32_u24 v13, {magic16(7)}, v12")
        a("v_lshrrev_b32 v13, 16, v13")
        a("v_mul_u32_u24 v14, 7, v13")
        a("v_sub_u32 v14, v12, v14")
        a("v_mul_u32_u24 v13, 2688, v13")
        a(f"v_lshl_add_u32 v{5+b}, v14, 4, v13")
    a("s_mul_i32 s30, s4, 112")
    for i in range(6):
        L = a.uid("wdma_skip")
        a(f"s_add_u32 s31, s3, {4*i}")
        if i == 5:
            a("s_cmp_ge_u32 s31, 21")
            a(f"s_cbranch_scc1 {L}")
        a(f"s_mul_hi_u32 s32, s31, {magic(7, 64)}")
        a("s_mul_i32 s33, s32, 7")
        a("s_sub_u32 s33, s31, s33")
        a(f"s_mul_i32 s34, s33, {64*2688}")
        a("s_mul_i32 s35, s32, 896")
        a("s_add_u32 s34, s34, s35")
        a("s_add_u32 s34, s34, s30")
        a(f"s_mul_i32 s35, s31, 7168")
        a("s_mov_b32 m0, s35")
        for b in range(7):
            a(f"buffer_load_dwordx4 v{5+b}, s[16:19], s34 offen lds")
            if b < 6: a("s_add_u32 m0, m0, 1024")
        a.label(L)

def magic16(d, nmax=512):
    m = (65536 + d - 1)//d
    for n in range(nmax):
        assert (n*m) >> 16 == n//d
    return m

def qkv_ln_stats(a):
    for q in range(56):
        a(f"v_lshlrev_b32 v{XF+2*q}, 16, v{XP+q}")
        a(f"v_and_b32 v{XF+2*q+1}, 0xffff0000, v{XP+q}")
    for i in range(4):
        a(f"v_mov_b32 v{2+i}, v{XF+i}")
        a(f"v_mul_f32 v{6+i}, v{XF+i}, v{XF+i}")
    for q in range(4, 112):
        a(f"v_add_f32 v{2+q%4}, v{2+q%4}, v{XF+q}")
        a(f"v_fmac_f32 v{6+q%4}, v{XF+q}, v{XF+q}")
    a("v_add_f32 v2, v2, v3"); a("v_add_f32 v4, v4, v5"); a("v_add_f32 v6, v6, v7"); a("v_add_f32 v8, v8, v9")
    a("v_add_f32 v2, v2, v4"); a("v_add_f32 v3, v6, v8")
    a("v_mov_b32 v4, v2"); a("v_mov_b32 v5, v3")
    a("v_permlane32_swap_b32 v2, v4"); a("v_permlane32_swap_b32 v3, v5")
    a("v_add_f32 v2, v2, v4"); a("v_add_f32 v3, v3, v5")
    a("v_and_b32 v6, 31, v1")
    a("v_lshlrev_b32 v6, 3, v6")
    a("s_lshl_b32 s28, s3, 8")
    a(f"s_add_u32 s28, s28, {LDS_STAT}")
    a("v_add_u32 v7, s28, v6")
    a(f"ds_write_b64 v7, v[2:3]")
    a("s_xor_b32 s28, s3, 2")
    a("s_lshl_b32 s28, s28, 8")
    a(f"s_add_u32 s28, s28, {LDS_STAT}")
    a("v_add_u32 v7, s28, v6")
    a("s_waitcnt lgkmcnt(0)")
    a("s_barrier")
    a(f"ds_read_b64 v[4:5], v7")
    a("s_waitcnt lgkmcnt(0)")
    a("v_add_f32 v2, v2, v4"); a("v_add_f32 v3, v3, v5")
    a(f"v_mul_f32 v2, {f32bits(1/448):#x}, v2")
    a(f"v_mul_f32 v3, {f32bits(1/448):#x}, v3")
    a("v_fma_f32 v3, -v2, v2, v3")
    a("v_max_f32 v3, 0, v3")
    a(f"v_add_f32 v3, {f32bits(1e-5):#x}, v3")
    a("v_rsq_f32 v3, v3")
    a("v_mul_f32 v2, v2, v3")
    for q in range(112):
        a(f"v_fma_f32 v{XF+q}, v{XF+q}, v3, -v2")

def qkv_addr(a):
    a("v_lshrrev_b32 v2, 5, v1")
    a("v_and_b32 v3, 15, v1")
    a("v_lshrrev_b32 v4, 2, v3")
    a("v_lshl_add_u32 v4, v2, 3, v4")
    a("v_mul_u32_u24 v4, 112, v4")
    a("v_bfe_u32 v5, v1, 4, 1")
    a("v_lshl_add_u32 v4, v5, 5, v4")
    a("v_and_b32 v5, 3, v1")
    a("v_lshl_add_u32 v4, v5, 3, v4")
    a(f"s_mul_i32 s28, s7, {224*112}")
    a("s_mul_i32 s29, s7, 56")
    a("s_sub_u32 s30, 56, s29")
    a("s_add_u32 s29, s29, s28"); a("s_add_u32 s30, s30, s28")
    for sg in range(3):
        a(f"s_add_u32 s31, s29, {sg*SEG}"); a(f"v_add_u32 v{V_WO+sg}, s31, v4")
        a(f"s_add_u32 s31, s30, {sg*SEG}"); a(f"v_add_u32 v{V_WF+sg}, s31, v4")
    a("s_mul_i32 s28, s7, 896")
    a(f"s_add_u32 s28, s28, {LDS_MODS}")
    a("v_lshlrev_b32 v5, 5, v2")
    a(f"v_add_u32 v{V_MOD}, s28, v5")

WB = [16, 40]
MB = 64

def qkv_gemm(a):
    MS = 240
    HF = [64, 68]
    def rd_mods(s):
        a(f"ds_read_b128 v[{MS}:{MS+3}], v{V_MOD} offset:{64*s+1792}")
        a(f"ds_read_b128 v[{MS+4}:{MS+7}], v{V_MOD} offset:{64*s+1792+16}")
        a(f"ds_read_b128 v[{MS+8}:{MS+11}], v{V_MOD} offset:{64*s}")
        a(f"ds_read_b128 v[{MS+12}:{MS+15}], v{V_MOD} offset:{64*s+16}")
    def rd_w(s, c):
        buf = WB[s % 2] + 4*c
        av = (V_WO + c) if c < 3 else (V_WF + c - 3)
        a(f"ds_read_b64_tr_b16 v[{buf}:{buf+1}], v{av} offset:{1792*s}")
        a(f"ds_read_b64_tr_b16 v[{buf+2}:{buf+3}], v{av} offset:{1792*s+448}")
    def mk_h(s):
        hf = HF[s % 2]
        for e in range(8):
            x = XF + 8*s + e
            a(f"v_fma_f32 v{x}, v{x}, v{MS+e}, v{MS+8+e}")
        for q in range(4):
            a(f"v_cvt_pk_bf16_f32 v{hf+q}, v{XF+8*s+2*q}, v{XF+8*s+2*q+1}")
    def mfma(s, c):
        buf = WB[s % 2] + 4*c; hf = HF[s % 2]
        dst = f"v[{ACC+16*c}:{ACC+16*c+15}]" if c < 3 else f"a[{16*(c-3)}:{16*(c-3)+15}]"
        cin = dst if s > 0 else "0"
        W = f"v[{buf}:{buf+3}]"; Hh = f"v[{hf}:{hf+3}]"
        if c % 3 == 2:
            a(f"v_mfma_f32_32x32x16_bf16 {dst}, {Hh}, {W}, {cin}")
        else:
            a(f"v_mfma_f32_32x32x16_bf16 {dst}, {W}, {Hh}, {cin}")
    rd_mods(0)
    for c in range(6): rd_w(0, c)
    a("s_waitcnt lgkmcnt(12)")
    mk_h(0)
    for s in range(14):
        a("s_waitcnt lgkmcnt(0)")
        if s < 13: rd_mods(s+1)
        for c in range(6):
            mfma(s, c)
            if s < 13: rd_w(s+1, c)
        if s < 13:
            a("s_waitcnt lgkmcnt(12)")
            mk_h(s+1)

def qkv_reduce_and_store(a, store_flags=""):
    a("s_barrier")
    a("v_lshlrev_b32 v2, 4, v1")
    a("s_mul_i32 s28, s3, 12288")
    a("v_add_u32 v3, s28, v2")
    for i in range(12):
        a(f"ds_write_b128 v3, a[{4*i}:{4*i+3}] offset:{1024*i}")
    a("s_xor_b32 s28, s3, 2")
    a("s_mul_i32 s28, s28, 12288")
    a("v_add_u32 v3, s28, v2")
    a("s_waitcnt lgkmcnt(0)")
    a("s_barrier")
    for i in range(12):
        a(f"ds_read_b128 v[{16+4*i}:{19+4*i}], v3 offset:{1024*i}")
    a("s_waitcnt lgkmcnt(0)")
    for i in range(48):
        a(f"v_add_f32 v{ACC+i}, v{ACC+i}, v{16+i}")
    Q, K, V = ACC, ACC+16, ACC+32
    a("s_lshl_b32 s28, s4, 1"); a("s_add_u32 s28, s28, s7")
    a("s_lshl_b32 s29, s5, 1"); a("s_add_u32 s29, s29, s6")
    a("s_lshl_b32 s30, s28, 6"); a("s_add_u32 s30, s30, s29")
    a("s_lshl_b32 s31, s30, 11")
    a("v_cmp_lt_u32 vcc, 31, v1")
    a(f"s_mov_b32 s33, {f32bits(QSCALE):#x}")
    for r in range(16): a(f"v_mul_f32 v{Q+r}, s33, v{Q+r}")
    for q in range(8): a(f"v_cvt_pk_bf16_f32 v{16+q}, v{Q+2*q}, v{Q+2*q+1}")
    a("v_mov_b32 v4, 0")
    a("v_cndmask_b32 v22, v22, v4, vcc"); a("v_cndmask_b32 v23, v23, v4, vcc")
    a(f"s_add_u32 s32, s31, {WS_Q}")
    a(f"buffer_store_dwordx4 v[16:19], v2, s[8:11], s32 offen {store_flags}")
    a(f"buffer_store_dwordx4 v[20:23], v2, s[8:11], s32 offen offset:1024 {store_flags}")
    for r in range(12, 16): a(f"v_cndmask_b32 v{K+r}, v{K+r}, v4, vcc")
    a(f"v_mul_f32 v5, v{K}, v{K}")
    for r in range(1, 16): a(f"v_fmac_f32 v5, v{K+r}, v{K+r}")
    for q in range(8): a(f"v_cvt_pk_bf16_f32 v{24+q}, v{K+2*q}, v{K+2*q+1}")
    a("v_mov_b32 v6, 0x3f80")
    a("v_cndmask_b32 v30, v30, v6, vcc")
    a(f"s_add_u32 s32, s31, {WS_K}")
    a(f"buffer_store_dwordx4 v[24:27], v2, s[8:11], s32 offen {store_flags}")
    a(f"buffer_store_dwordx4 v[28:31], v2, s[8:11], s32 offen offset:1024 {store_flags}")
    a("v_mov_b32 v6, v5")
    a("v_permlane32_swap_b32 v5, v6")
    a("v_add_f32 v5, v5, v6")
    for sh in (1, 2, 4, 8):
        a(f"v_max_f32_dpp v5, v5, v5 row_ror:{sh} row_mask:0xf bank_mask:0xf")
    a("v_readlane_b32 s33, v5, 0"); a("v_readlane_b32 s34, v5, 16")
    a("s_max_u32 s33, s33, s34")
    a("v_mov_b32 v5, s33")
    a("s_lshl_b32 s32, s30, 2")
    a(f"s_add_u32 s32, s32, {WS_KMAX}")
    a("v_mov_b32 v6, 0")
    a("v_cmp_eq_u32 s[34:35], 0, v1")
    a("s_and_saveexec_b64 s[36:37], s[34:35]")
    a(f"buffer_store_dword v5, v6, s[8:11], s32 offen {store_flags}")
    a("s_mov_b64 exec, s[36:37]")
    for q in range(8): a(f"v_cvt_pk_bf16_f32 v{32+q}, v{V+2*q}, v{V+2*q+1}")
    a("v_and_b32 v6, 31, v1")
    a("v_cmp_lt_u32 vcc, 27, v6")
    a("v_cmp_eq_u32 s[34:35], 28, v6")
    a("v_mov_b32 v7, 0x3f803f80")
    a("v_cndmask_b32 v7, 0, v7, s[34:35]")
    for q in range(8): a(f"v_cndmask_b32 v{32+q}, v{32+q}, v7, vcc")
    a(f"s_add_u32 s32, s31, {WS_V}")
    a(f"buffer_store_dwordx4 v[32:35], v2, s[8:11], s32 offen {store_flags}")
    a(f"buffer_store_dwordx4 v[36:39], v2, s[8:11], s32 offen offset:1024 {store_flags}")

def k_qkv(a, name):
    kernel_begin(a, name, 256)
    srd(a, 12, KA_X, SZ_X); srd(a, 16, KA_WQKV, SZ_WQKV)
    a("s_waitcnt lgkmcnt(0)")
    qkv_issue_loads(a)
    a("v_cmp_gt_u32 vcc, 224, v0")
    a("s_and_saveexec_b64 s[36:37], vcc")
    a("v_lshlrev_b32 v2, 4, v0")
    a(f"buffer_load_dwordx4 v[240:243], v2, s[8:11], 0 offen offset:{WS_MOD}")
    a("s_waitcnt vmcnt(0)")
    a(f"v_add_u32 v2, {LDS_MODS}, v2")
    a("ds_write_b128 v2, v[240:243]")
    a("s_mov_b64 exec, s[36:37]")
    a("s_waitcnt vmcnt(0) lgkmcnt(0)")
    qkv_ln_stats(a)
    qkv_addr(a)
    qkv_gemm(a)
    qkv_reduce_and_store(a)
    a("s_waitcnt vmcnt(0)")
    kernel_end(a, name)
    return kdesc(name, 256, 48)
```

```python
import sys, os
sys.path.insert(0, os.path.dirname(os.path.abspath(__file__)))
from asm import Asm, fix_hazards
from common import *
import k_prep, k_qkv, k_attn, k_ksplit, k_ffn1

HEADER = open(os.path.join(os.path.dirname(os.path.abspath(__file__)), "header.txt")).read()
def build_multi(path):
    kernels = [("prep_kernel", k_prep.k_prep, 2048), ("qkv_kernel", k_qkv.k_qkv, k_qkv.LDS_QKV_TOTAL), ("attn_kernel", k_attn.k_attn, 49152),
               ("wo_kernel", k_ksplit.k_wo, 49152), ("ffn1_kernel", k_ffn1.k_ffn1, 5*k_ffn1.SLOT), ("ffn2_kernel", k_ksplit.k_ffn2, 49152)]
    out = [HEADER.rstrip()]
    for nm, fn, lds in kernels:
        out.append(f"; @launch kernel={nm} grid=(256,1,1) block=(256,1,1) lds={lds}")
    out.append('.amdgcn_target "amdgcn-amd-amdhsa--gfx950"')
    out.append(".text")
    descs = []
    for nm, fn, lds in kernels:
        a = Asm()
        descs.append(fn(a, nm))
        lines, n = fix_hazards(a.lines)
        print(f"{nm}: {len(lines)} lines, {n} wait states inserted")
        out += lines
    out.append('.section .rodata,"a"')
    for d in descs:
        out.append(".p2align 6"); out.append(d.rstrip())
    open(path, "w").write("\n".join(out) + "\n")
if __name__ == "__main__":
    build_multi(sys.argv[1] if len(sys.argv) > 1 else "multi.s")
```

```python
import sys
def kernel(body, nwaves_per_simd, iters=200, nv=128, grid=256):
    threads = 256*nwaves_per_simd
    assert threads <= 1024
    s = []
    s.append(f"; @launch grid=({grid},1,1) block=({threads},1,1) lds=0")
    s.append('.amdgcn_target "amdgcn-amd-amdhsa--gfx950"')
    s.append(".text\n.globl mb_kernel\n.p2align 8\n.type mb_kernel,@function\nmb_kernel:")
    s.append("s_load_dwordx2 s[4:5], s[0:1], 8")
    s.append("v_lshrrev_b32 v1, 6, v0")
    s.append("s_nop 1")
    s.append("v_readfirstlane_b32 s20, v1")
    for i in range(2, nv):
        s.append(f"v_mov_b32 v{i}, 0.5")
    s.append("s_waitcnt lgkmcnt(0)")
    s.append("s_mov_b32 s8, s4\ns_mov_b32 s9, s5\ns_mov_b32 s10, 0x1000000\ns_mov_b32 s11, 0x20000")
    s.append("s_barrier")
    s.append("s_memtime s[12:13]")
    s.append("s_waitcnt lgkmcnt(0)")
    s.append(f"s_mov_b32 s16, {iters}")
    s.append(".p2align 6\nL_loop:")
    s.append(body)
    s.append("s_sub_u32 s16, s16, 1\ns_cmp_lg_u32 s16, 0\ns_cbranch_scc1 L_loop")
    s.append("s_memtime s[14:15]")
    s.append("s_waitcnt lgkmcnt(0)")
    s.append("s_sub_u32 s14, s14, s12")
    s.append(f"s_mul_i32 s21, s2, {threads//64}\ns_add_u32 s21, s21, s20\ns_lshl_b32 s21, s21, 2")
    s.append("v_mov_b32 v2, s14\nv_mov_b32 v3, s21")
    s.append("v_cmp_eq_u32 vcc, 0, v0\nv_and_b32 v4, 63, v0\nv_cmp_eq_u32 vcc, 0, v4\ns_and_saveexec_b64 s[22:23], vcc")
    s.append("buffer_store_dword v2, v3, s[8:11], 0 offen")
    s.append("s_waitcnt vmcnt(0)\ns_endpgm")
    s.append(f""".section .rodata,"a"
.p2align 6
.amdhsa_kernel mb_kernel
  .amdhsa_next_free_vgpr {nv}
  .amdhsa_next_free_sgpr 96
  .amdhsa_accum_offset {nv}
  .amdhsa_group_segment_fixed_size 0
  .amdhsa_kernarg_size 24
  .amdhsa_user_sgpr_count 2
  .amdhsa_user_sgpr_kernarg_segment_ptr 1
  .amdhsa_system_sgpr_workgroup_id_x 1
.end_amdhsa_kernel""")
    return "\n".join(s) + "\n"

bodies = {}
N = 64
bodies["fma"] = "\n".join(f"v_fma_f32 v{8+i%32}, v{40+i%32}, v{72+i%16}, v{8+i%32}" for i in range(N))
bodies["exp"] = "\n".join(f"v_exp_f32 v{8+i%32}, v{40+i%32}" for i in range(N))
bodies["pkfma"] = "\n".join(f"v_pk_fma_f32 v[{8+2*(i%16)}:{9+2*(i%16)}], v[{40+2*(i%16)}:{41+2*(i%16)}], v[{72+2*(i%8)}:{73+2*(i%8)}], v[{8+2*(i%16)}:{9+2*(i%16)}]" for i in range(N))
bodies["cvt"] = "\n".join(f"v_cvt_pk_bf16_f32 v{8+i%32}, v{40+i%32}, v{72+i%16}" for i in range(N))
bodies["expfma"] = "\n".join((f"v_exp_f32 v{8+i%32}, v{40+i%32}" if i%2==0 else f"v_fma_f32 v{8+i%32}, v{40+i%32}, v{72+i%16}, v{8+i%32}") for i in range(N))
bodies["exp2fma"] = "\n".join((f"v_exp_f32 v{8+i%32}, v{40+i%32}" if i%3==0 else f"v_fma_f32 v{8+i%32}, v{40+i%32}, v{72+i%16}, v{8+i%32}") for i in range(63))
bodies["mov"] = "\n".join(f"v_mov_b32 v{8+i%32}, v{40+i%32}" for i in range(N))
bodies["max3"] = "\n".join(f"v_max3_f32 v{8+i%32}, v{40+i%32}, v{72+i%16}, v{8+i%32}" for i in range(N))
bodies["mfma"] = "\n".join(f"v_mfma_f32_32x32x16_bf16 v[{16*(i%4)+8}:{16*(i%4)+23}], v[80:83], v[84:87], v[{16*(i%4)+8}:{16*(i%4)+23}]" for i in range(16))
def attn_tile(t):
    L = []
    S = 8 + 16*(t%2)
    S2 = 8 + 16*((t+1)%2)
    P = 40
    O = 48
    seq = []
    for i in range(16):
        seq.append(f"v_exp_f32 v{64+i}, v{S+i}")
        if i%2==1: seq.append(f"v_cvt_pk_bf16_f32 v{P+i//2}, v{64+i-1}, v{64+i}")
    m = [f"v_mfma_f32_32x32x16_bf16 v[{S2}:{S2+15}], v[80:83], v[84:87], 0",
         f"v_mfma_f32_32x32x16_bf16 v[{S2}:{S2+15}], v[88:91], v[92:95], v[{S2}:{S2+15}]",
         f"v_mfma_f32_32x32x16_bf16 v[{O}:{O+15}], v[96:99], v[100:103], v[{O}:{O+15}]",
         f"v_mfma_f32_32x32x16_bf16 v[{O}:{O+15}], v[104:107], v[108:111], v[{O}:{O+15}]"]
    out = []
    for i, x in enumerate(seq):
        if i % 6 == 0: out.append(m[i//6])
        out.append(x)
    return "\n".join(out)
bodies["attn"] = attn_tile(0) + "\n" + attn_tile(1)
for name, b in bodies.items():
    for w in (1, 2, 4):
        open(f"v_{name}_w{w}.s", "w").write(kernel(b, w))
```

```python
from gen_valu import kernel
def step(s, tr=True, mods=True, valu=True, waits=True, agpr=True, order=0):
    L = []
    WB = [16, 40]; HF = [64, 68]; MS = 240; XF = 72; ACC = 184
    for c in range(6):
        buf = WB[s % 2] + 4*c; nb = WB[(s+1) % 2] + 4*c; hf = HF[s % 2]
        if waits: L.append("s_waitcnt lgkmcnt(14)")
        dst = f"v[{ACC+16*c}:{ACC+16*c+15}]" if (c < 3 or not agpr) and c < 3 else (f"a[{16*(c-3)}:{16*(c-3)+15}]")
        L.append(f"v_mfma_f32_32x32x16_bf16 {dst}, v[{buf}:{buf+3}], v[{hf}:{hf+3}], {dst}")
        if tr:
            L.append(f"ds_read_b64_tr_b16 v[{nb}:{nb+1}], v2 offset:{(s%8)*5376 + 56*(c%3)}"); L.append(f"ds_read_b64_tr_b16 v[{nb+2}:{nb+3}], v2 offset:{(s%8)*5376 + 56*(c%3) + 672}")
        else:
            L.append(f"ds_read_b128 v[{nb}:{nb+3}], v3 offset:{(s%8)*5376 + 896*(c%3)}")
        x = XF + 8*((s+1) % 13)
        if valu:
            if c == 1: L.append("s_waitcnt lgkmcnt(4)"); L += [f"v_fma_f32 v{x+e}, v{x+e}, v{MS+e}, v{MS+8+e}" for e in range(0, 3)]
            if c == 2: L += [f"v_fma_f32 v{x+e}, v{x+e}, v{MS+e}, v{MS+8+e}" for e in range(3, 6)]
            if c == 3: L += [f"v_fma_f32 v{x+e}, v{x+e}, v{MS+e}, v{MS+8+e}" for e in range(6, 8)] + [f"v_cvt_pk_bf16_f32 v{HF[(s+1)%2]}, v{x}, v{x+2}"]
            if c == 4: L += [f"v_cvt_pk_bf16_f32 v{HF[(s+1)%2]+q}, v{x+q}, v{x+q+2}" for q in range(1, 4)]
        if mods and c == 4: L += [f"ds_read_b128 v[{MS}:{MS+3}], v4 offset:{32*s}", f"ds_read_b128 v[{MS+4}:{MS+7}], v4 offset:{32*s+16}"]
        if mods and c == 5: L += [f"ds_read_b128 v[{MS+8}:{MS+11}], v4 offset:{32*s+1792}", f"ds_read_b128 v[{MS+12}:{MS+15}], v4 offset:{32*s+1808}"]
    return L
pre = """v_and_b32 v5, 63, v0
v_lshrrev_b32 v6, 5, v5
v_and_b32 v7, 12, v5
v_add_u32 v7, v7, v6
v_mul_u32_u24 v2, 336, v7
v_bfe_u32 v7, v5, 4, 1
v_lshl_add_u32 v2, v7, 5, v2
v_and_b32 v7, 3, v5
v_lshl_add_u32 v2, v7, 3, v2
v_and_b32 v7, 31, v5
v_mul_u32_u24 v3, 448, v6
v_lshl_add_u32 v3, v7, 4, v3
v_mul_u32_u24 v4, 896, v6
v_add_u32 v4, 50000, v4
"""
for name, kw in [("full", {}), ("b128", dict(tr=False)), ("nomods", dict(mods=False)), ("novalu", dict(valu=False)), ("nowaits", dict(waits=False)), ("nomods_novalu", dict(mods=False, valu=False))]:
    body = "\n".join(sum((step(s, **kw) for s in range(14)), []))
    k = kernel(body, 1, iters=30, nv=256)
    k = k.replace("s_barrier\ns_memtime s[12:13]", pre + "s_barrier\ns_memtime s[12:13]").replace("lds=0", "lds=65536")
    k = k.replace(".amdhsa_next_free_vgpr 256", ".amdhsa_next_free_vgpr 320")
    open(f"g_{name}.s","w").write(k)
```
